```python
import torch

def _softmax(x, axis=-1):
    return torch.softmax(x, dim=axis)
def _gelu(x):
    return torch.nn.functional.gelu(x, approximate="tanh")
def _silu(x):
    return torch.nn.functional.silu(x)
def _sigmoid(x):
    return torch.sigmoid(x)
def _layernorm(x, axis=-1, eps=1e-5):
    m = x.mean(dim=axis, keepdim=True)
    v = x.var(dim=axis, keepdim=True, unbiased=False)
    return (x - m) / torch.sqrt(v + eps)
def _scatter_add(tgt, idx, src, axis=0):
    return tgt.clone().index_add_(axis, idx, src)
def _segment_sum(src, seg, n):
    out = torch.zeros((n,) + src.shape[1:], dtype=src.dtype)
    return out.index_add_(0, seg, src)
def _pad(x, pw):
    flat = tuple(v for pair in reversed(pw) for v in pair)
    return torch.nn.functional.pad(x, flat)

kernel_name = 'standalone__gqa_block_cached__near_ridge'

def setup_inputs():

    _w = (lambda a: (lambda t: t.to(torch.bfloat16) if t.is_floating_point() else t)(torch.as_tensor(a)))
    B, Sq, D = 16, 80, 448
    Hq, Hkv, Sk, Dh = 16, 8, 512, 256
    assert Hq % Hkv == 0, (Hq, Hkv)
    return {
        "x": _w((lambda *s: torch.randn(*s, dtype=torch.bfloat16) * 0.8)(B, Sq, D)),
        "k_cache": _w((lambda *s: torch.randn(*s, dtype=torch.bfloat16) * 0.8)(B, Hkv, Sk, Dh)),
        "v_cache": _w((lambda *s: torch.randn(*s, dtype=torch.bfloat16) * 0.05)(B, Hkv, Sk, Dh)),
        "wq": _w((lambda *s: torch.randn(*s, dtype=torch.bfloat16) * 0.8)(D, Hq * Dh) * (D ** -0.5)),
        "wo": _w((lambda *s: torch.randn(*s, dtype=torch.bfloat16) * 0.05)(Hq * Dh, D) * ((Hq * Dh) ** -0.5)),
    }

def reference(x, k_cache, v_cache, wq, wo):
    B, Sq, D = x.shape
    Hq, Dh = 16, 256
    Hkv = k_cache.shape[1]
    rep = Hq // Hkv
    q = (lambda x, *d: x.permute(*d))((x @ wq).reshape(B, Sq, Hq, Dh), 0, 2, 1, 3)
    k = (lambda x, n, axis: torch.repeat_interleave(x, n, dim=axis))(k_cache, rep, axis=1)
    v = (lambda x, n, axis: torch.repeat_interleave(x, n, dim=axis))(v_cache, rep, axis=1)
    scores = torch.einsum("bhqd,bhkd->bhqk", q, k) * (Dh ** -0.5)
    p = _softmax(scores, axis=-1)
    o = torch.einsum("bhqk,bhkd->bhqd", p, v)
    return (lambda x, *d: x.permute(*d))(o, 0, 2, 1, 3).reshape(B, Sq, Hq * Dh) @ wo
```

```python
import struct

class R:
    def __init__(self, kind, idx, n=1):
        self.kind, self.idx, self.n = kind, idx, n
    def __str__(self):
        if self.kind in ("m0", "vcc", "exec"):
            return self.kind
        if self.n == 1:
            return f"{self.kind}{self.idx}"
        return f"{self.kind}[{self.idx}:{self.idx + self.n - 1}]"
    def regs(self):
        if self.kind in ("m0", "vcc", "exec"):
            return [self.kind]
        return [f"{self.kind}{self.idx + i}" for i in range(self.n)]
    def sub(self, off, n=1):
        assert off + n <= self.n
        return R(self.kind, self.idx + off, n)
    def __getitem__(self, i):
        return self.sub(i, 1)

def v(i, n=1): return R("v", i, n)
def a(i, n=1): return R("a", i, n)
def s(i, n=1): return R("s", i, n)
M0 = R("m0", 0)
VCC = R("vcc", 0)
EXEC = R("exec", 0)

def f2u(x):
    return struct.unpack("<I", struct.pack("<f", x))[0]

def _regs(ops):
    out = []
    for o in ops:
        if isinstance(o, R):
            out += o.regs()
        elif isinstance(o, Neg):
            out += o.r.regs()
    return out

class Neg:
    def __init__(self, r): self.r = r
    def __str__(self): return f"-{self.r}"

TRANS = ("v_exp_f32", "v_log_f32", "v_rcp_f32", "v_rsq_f32", "v_sqrt_f32", "v_sin_f32", "v_cos_f32")

class Asm:
    def __init__(self):
        self.lines = []
        self.pos = 0
        self.hist = []
        self.vm_issued = 0; self.vm_done = 0
        self.lg_issued = 0; self.lg_done = 0
        self.nops = 0
        self.count = {}

    def raw(self, text):
        self.lines.append(text)

    def comment(self, t):
        self.lines.append(f"    ; {t}")

    def label(self, name):
        self.lines.append(f"{name}:")

    def reset_hazards(self):
        self.hist = []

    def _need(self, cls, writes, reads, extra):
        need = 0
        W = set(writes); Rd = set(reads)
        for (p, c, w, r, ex) in reversed(self.hist):
            dist = self.pos - p - 1
            if dist >= 20:
                break
            w = set(w); r = set(r)
            req = 0
            isvalu_p = c in ("valu", "trans", "permlane", "readlane", "dpp")
            isvalu_c = cls in ("valu", "trans", "permlane", "readlane", "dpp")
            if isvalu_p:
                wv = {x for x in w if x[0] in "va" and x not in ("vcc",)}
                ws = {x for x in w if x[0] == "s" or x == "vcc"}
                if cls == "mfma" and wv & Rd: req = max(req, 2)
                if cls == "permlane" and wv & Rd: req = max(req, 2)
                if cls == "dpp" and wv & Rd: req = max(req, 2)
                if cls == "readlane" and wv & Rd: req = max(req, 1)
                if c == "trans" and isvalu_c and cls != "trans" and wv & Rd: req = max(req, 1)
                if cls in ("vmem", "dma") and ws & Rd: req = max(req, 5)
                if isvalu_c and ws & Rd: req = max(req, 2 if cls != "readlane" else 4)
                if cls == "salu" and ws & Rd: req = max(req, 1)
                if "exec" in w and cls == "mfma": req = max(req, 4)
            if c == "mfma":
                passes = ex["passes"]
                full = {4: 8, 8: 12}[passes]
                part = {4: 6, 8: 10}[passes]
                war = {4: 3, 8: 7}[passes]
                D = w
                if cls == "mfma":
                    AB = set(extra["ab"]); C = set(extra["c"])
                    if D & AB: req = max(req, full)
                    if D & C:
                        if not (extra["c"] == ex["d"] and extra["passes"] == passes): req = max(req, part)
                    elif D & W:
                        req = max(req, part)
                else:
                    if D & (Rd | W): req = max(req, full)
                    if isvalu_c and set(ex["c"]) & W: req = max(req, war)
            if c == "salu" and "m0" in w and cls == "dma": req = max(req, 1)
            if c == "vmem" and ex and ex.get("wide_store"):
                if set(ex["data"]) & W: req = max(req, 2)
            need = max(need, req - dist)
        return need

    def ins(self, text, cls, writes=(), reads=(), extra=None):
        w = _regs(writes); r = _regs(reads)
        n = self._need(cls, w, r, extra)
        while n > 0:
            k = min(n, 16)
            self.lines.append(f"    s_nop {k - 1}")
            self.pos += k; n -= k; self.nops += 1
        self.lines.append("    " + text)
        self.hist.append((self.pos, cls, w, r, extra))
        if len(self.hist) > 64: self.hist = self.hist[-40:]
        self.pos += 1
        key = text.split()[0]
        self.count[key] = self.count.get(key, 0) + 1

    def nop(self, k):
        while k > 0:
            n = min(k, 16)
            self.lines.append(f"    s_nop {n - 1}")
            self.pos += n; k -= n

    def salu(self, op, dst, *src):
        self.ins(f"{op} {dst}, " + ", ".join(str(x) for x in src), "salu", [dst], list(src))
    def scmp(self, op, x, y):
        self.ins(f"{op} {x}, {y}", "salu", [], [x, y])
    def valu(self, op, dst, *src, mods=""):
        cls = "trans" if op in TRANS else "valu"
        rd = list(src)
        if op in ("v_fmac_f32",): rd.append(dst)
        self.ins(f"{op} {dst}, " + ", ".join(str(x) for x in src) + mods, cls, [dst], rd)
    def readfirstlane(self, dst, src):
        self.ins(f"v_readfirstlane_b32 {dst}, {src}", "readlane", [dst], [src])
    def permlane(self, op, x, y):
        self.ins(f"{op} {x}, {y}", "permlane", [x, y], [x, y])
    def mfma16(self, d, A, B, c):
        cr = c.regs() if isinstance(c, R) else []
        self.ins(f"v_mfma_f32_16x16x32_bf16 {d}, {A}, {B}, {c}", "mfma", [d], [A, B] + ([c] if isinstance(c, R) else []),
                 dict(passes=4, ab=A.regs() + B.regs(), c=cr, d=d.regs()))
    def _vm_issue(self):
        if self.vm_issued - self.vm_done >= 63:
            self.wait_vm(self.vm_issued - 63)
        i = self.vm_issued; self.vm_issued += 1
        return i
    def _lg_issue(self):
        i = self.lg_issued; self.lg_issued += 1
        return i
    def bload(self, dst, voff, srd, soff, off=0, mods=""):
        i = self._vm_issue()
        n = dst.n
        op = {1: "buffer_load_dword", 2: "buffer_load_dwordx2", 4: "buffer_load_dwordx4"}[n]
        o = f" offset:{off}" if off else ""
        self.ins(f"{op} {dst}, {voff}, {srd}, {soff} offen{o}{mods}", "vmem", [dst], [voff, srd, soff])
        return i
    def bload_lds(self, voff, srd, soff, off=0, mods=""):
        i = self._vm_issue()
        o = f" offset:{off}" if off else ""
        self.ins(f"buffer_load_dwordx4 {voff}, {srd}, {soff} offen{o}{mods} lds", "dma", [], [voff, srd, soff, M0])
        return i
    def bstore(self, data, voff, srd, soff, off=0, mods=""):
        i = self._vm_issue()
        n = data.n
        op = {1: "buffer_store_dword", 2: "buffer_store_dwordx2", 4: "buffer_store_dwordx4"}[n]
        o = f" offset:{off}" if off else ""
        self.ins(f"{op} {data}, {voff}, {srd}, {soff} offen{o}{mods}", "vmem", [], [data, voff, srd, soff],
                 dict(wide_store=(n >= 3), data=data.regs()))
        return i
    def dsread(self, dst, addr, off=0, tr=False):
        i = self._lg_issue()
        if tr:
            op = "ds_read_b64_tr_b16"; assert dst.n == 2
        else:
            op = {1: "ds_read_b32", 2: "ds_read_b64", 4: "ds_read_b128"}[dst.n]
        assert 0 <= off < 65536, off
        o = f" offset:{off}" if off else ""
        self.ins(f"{op} {dst}, {addr}{o}", "lds", [dst], [addr])
        return i
    def dswrite(self, addr, data, off=0):
        i = self._lg_issue()
        op = {1: "ds_write_b32", 2: "ds_write_b64", 4: "ds_write_b128"}[data.n]
        assert 0 <= off < 65536, off
        o = f" offset:{off}" if off else ""
        self.ins(f"{op} {addr}, {data}{o}", "lds", [], [addr, data])
        return i
    def wait_vm(self, seq):
        if seq is None or seq < self.vm_done: return
        n = self.vm_issued - seq - 1
        n = min(n, 63)
        self.ins(f"s_waitcnt vmcnt({n})", "other")
        self.vm_done = self.vm_issued - n
    def wait_lg(self, seq):
        if seq is None or seq < self.lg_done: return
        n = self.lg_issued - seq - 1
        n = min(n, 15)
        self.ins(f"s_waitcnt lgkmcnt({n})", "other")
        self.lg_done = self.lg_issued - n
    def wait_both(self, vseq, lseq):
        parts = []
        if vseq is not None and vseq >= self.vm_done:
            n = min(self.vm_issued - vseq - 1, 63); parts.append(f"vmcnt({n})"); self.vm_done = self.vm_issued - n
        if lseq is not None and lseq >= self.lg_done:
            n = min(self.lg_issued - lseq - 1, 15); parts.append(f"lgkmcnt({n})"); self.lg_done = self.lg_issued - n
        if parts:
            self.ins("s_waitcnt " + " ".join(parts), "other")
    def wait_lg_all(self):
        self.wait_lg(self.lg_issued - 1) if self.lg_issued > self.lg_done else None
    def wait_vm_all(self):
        self.wait_vm(self.vm_issued - 1) if self.vm_issued > self.vm_done else None
    def barrier(self):
        self.ins("s_barrier", "other")
    def other(self, text):
        self.ins(text, "other")
    def text(self):
        return "\n".join(self.lines) + "\n"
```

```python
import sys, math
from dsl import *

KN = "standalone__gqa_block_cached__near_ridge"
HEADER = open("cdna_kernels/" + KN + ".s.ref").read().split("; Override launch")[0]

OPT = dict(K0=8, K1=4, KQ=2, SWAP=1, STAMP=0)
for arg in sys.argv[2:]:
    k, val = arg.split("=")
    OPT[k] = int(val)

RING0 = 81920
RINGSZ = 18432
STATS = 155648
LDS1 = 163840

def srd(A, d, ptr, off_lo, size):
    A.salu("s_add_u32", d[0], ptr[0], off_lo)
    A.salu("s_addc_u32", d[1], ptr[1], 0)
    A.salu("s_and_b32", d[1], d[1], 0xffff)
    A.salu("s_mov_b32", d[2], size)
    A.salu("s_mov_b32", d[3], 0x20000)

def interleave(A, mf, fillers, start=0, per=1):
    fi = 0
    for i, m in enumerate(mf):
        m()
        if i >= start:
            for _ in range(per):
                if fi < len(fillers):
                    fillers[fi](); fi += 1
    while fi < len(fillers):
        fillers[fi](); fi += 1

def kernel1():
    A = Asm()
    A.raw(".p2align 8")
    A.raw(".globl attn_kernel")
    A.raw(".type attn_kernel,@function")
    A.label("attn_kernel")
    A.scmp("s_cmp_ge_u32", s(2), 256)
    A.other("s_cbranch_scc1 L_attn_end")
    A.other("s_load_dwordx16 s[4:19], s[0:1], 0")
    pX, pK, pV, pWQ, pWO, pOUT, pDBG, pWS = [s(4 + 2 * i, 2) for i in range(8)]
    sX, sWQ, sK, sV, sO = [s(20 + 4 * i, 4) for i in range(5)]
    sW, sHKV, sRr, sB, sHQ, sR8 = s(40), s(41), s(42), s(43), s(44), s(45)
    sT0, sT1, sRing, sC = s(46), s(47), s(48), s(49)
    sKT = [s(50 + i) for i in range(8)]
    sT2, sT3 = s(58), s(59)
    sXm = s(60)
    vLane, vQ, vG, vK, vXs, vWQs, vVs = v(1), v(2), v(3), v(4), v(5), v(6), v(7)
    vTR = [v(8 + i) for i in range(4)]
    vLin, vLin2, vQw, vStW, vStR, vPw = v(12), v(13), v(14), v(15), v(16), v(17)
    vM = [v(18 + i) for i in range(5)]
    vL = [v(23 + i) for i in range(5)]
    vT = [v(28 + i) for i in range(5)]
    vQr = v(33); vT5 = v(34); vT6 = v(35)
    vPk = [v(36, 4), v(40, 4)]
    A.valu("v_lshrrev_b32", vT5, 6, v(0))
    A.valu("v_and_b32", vLane, 63, v(0))
    A.readfirstlane(sW, vT5)
    A.salu("s_and_b32", sHKV, s(2), 7)
    A.salu("s_lshr_b32", sT0, s(2), 3)
    A.salu("s_and_b32", sRr, sT0, 1)
    A.salu("s_lshr_b32", sB, sT0, 1)
    A.salu("s_lshl_b32", sHQ, sHKV, 1)
    A.salu("s_add_u32", sHQ, sHQ, sRr)
    if OPT["SWAP"]:
        A.salu("s_lshl_b32", sR8, sRr, 13)
    else:
        A.salu("s_mov_b32", sR8, 0)
    A.valu("v_and_b32", vQ, 15, vLane)
    A.valu("v_lshrrev_b32", vG, 4, vLane)
    A.valu("v_lshlrev_b32", vK, 9, vQ)
    A.valu("v_lshl_add_u32", vK, vG, 4, vK)
    for kt in range(8):
        A.salu("s_xor_b32", sKT[kt], kt * 8192, sR8)
    A.other("s_waitcnt lgkmcnt(0)")
    A.salu("s_lshl_b32", sT0, sB, 3)
    A.salu("s_add_u32", sT0, sT0, sHKV)
    A.salu("s_lshl_b32", sT0, sT0, 18)
    A.salu("s_lshl_b32", sT1, sW, 16)
    A.salu("s_add_u32", sT1, sT1, sT0)
    srd(A, sK, pK, sT1, 65536)

    def Kreg(kt, ks):
        if kt < 6: return v(64 + 32 * kt + 4 * ks, 4)
        return a(160 + 32 * (kt - 6) + 4 * ks, 4)
    def Sreg(kt, qt):
        if kt == 0: return v(44 + 4 * qt, 4)
        if kt <= 6: return v(64 + 32 * (kt - 1) + 4 * qt, 4)
        if qt < 3: return v(64 + 20 + 4 * qt, 4)
        return v(64 + 32 + 20 + 4 * (qt - 3), 4)
    kseq = {}
    knext = [0]
    def issue_k():
        i = knext[0]
        if i >= 64: return False
        kt, ks = i // 8, i % 8
        kseq[(kt, ks)] = A.bload(Kreg(kt, ks), vK, sK, sKT[kt], off=ks * 64)
        knext[0] += 1
        return True
    for _ in range(OPT["K0"]): issue_k()

    A.salu("s_mul_i32", sT1, sB, 71680)
    srd(A, sX, pX, sT1, 71680)
    A.salu("s_lshl_b32", sT1, sHQ, 9)
    A.salu("s_lshl_b32", sT2, sW, 7)
    A.salu("s_add_u32", sT1, sT1, sT2)
    A.salu("s_sub_u32", sT3, 3670016, sT1)
    srd(A, sWQ, pWQ, sT1, sT3)
    A.salu("s_add_u32", sT0, sT0, sT2)
    A.salu("s_sub_u32", sT3, 262144, sT2)
    srd(A, sV, pV, sT0, sT3)
    A.salu("s_mul_i32", sRing, sW, RINGSZ)
    A.salu("s_add_u32", sRing, sRing, RING0)
    A.valu("v_mul_u32_u24", vXs, 896, vQ)
    A.valu("v_lshl_add_u32", vXs, vG, 4, vXs)
    A.salu("s_lshl_b32", sT1, sW, 6)
    A.valu("v_add_u32", vXs, sT1, vXs)
    A.valu("v_lshrrev_b32", vT[0], 3, vLane)
    A.valu("v_and_b32", vT[1], 7, vLane)
    A.valu("v_and_b32", vT[2], 6, vT[0])
    A.valu("v_xor_b32", vT[1], vT[1], vT[2])
    A.valu("v_lshlrev_b32", vT[1], 4, vT[1])
    A.valu("v_lshl_add_u32", vVs, vT[0], 9, vT[1])
    A.valu("v_and_b32", vT[2], 3, vT[0])
    A.valu("v_lshrrev_b32", vT[3], 2, vT[0])
    A.valu("v_lshl_add_u32", vT[2], vT[3], 3, vT[2])
    A.valu("v_lshl_add_u32", vWQs, vT[2], 13, vT[1])
    A.salu("s_mul_i32", sXm, sW, 5120)
    xseq = []
    wqseq = {}
    def issue_x(i, qt):
        A.salu("s_add_u32", M0, sXm, i * 20480 + qt * 1024)
        A.salu("s_mov_b32", sT1, i * 256 + qt * 14336)
        xseq.append(A.bload_lds(vXs, sX, sT1))
    BASEJ = [0, 16, 4, 20]
    def issue_wq(ks, j):
        A.salu("s_add_u32", M0, sRing, (ks % 4) * 4096 + j * 1024)
        A.salu("s_mov_b32", sT1, (ks * 32 + BASEJ[j]) * 8192)
        wqseq[(ks, j)] = A.bload_lds(vWQs, sWQ, sT1)
    pro = []
    for i in range(4):
        for qt in range(5): pro.append(lambda i=i, qt=qt: issue_x(i, qt))
    for ks in range(4):
        for j in range(4): pro.append(lambda ks=ks, j=j: issue_wq(ks, j))
    nk1 = OPT["K1"]
    step = max(1, len(pro) // max(1, nk1)) if nk1 else 10 ** 9
    for i, f in enumerate(pro):
        f()
        if nk1 and (i + 1) % step == 0 and nk1 > 0:
            issue_k(); nk1 -= 1
    A.valu("v_lshrrev_b32", vT[0], 2, vQ)
    A.valu("v_lshl_add_u32", vT[0], vG, 2, vT[0])
    A.valu("v_and_b32", vT[1], 3, vQ)
    A.valu("v_lshlrev_b32", vT[1], 3, vT[1])
    A.valu("v_lshl_add_u32", vT[1], vT[0], 7, vT[1])
    A.valu("v_add_u32", vT[1], sRing, vT[1])
    A.valu("v_bfe_u32", vT[2], vT[0], 1, 2)
    for dt in range(4):
        A.valu("v_xor_b32", vT[3], dt, vT[2])
        A.valu("v_lshl_add_u32", vTR[dt], vT[3], 5, vT[1])
    A.valu("v_lshlrev_b32", vLin, 4, vLane)
    A.valu("v_add_u32", vLin2, 40960, vLin)
    A.valu("v_add_u32", vQr, RING0, vLin)
    A.valu("v_lshlrev_b32", vQw, 4, vQ)
    A.valu("v_lshrrev_b32", vT[0], 1, vG)
    A.valu("v_lshl_add_u32", vQw, vT[0], 8, vQw)
    A.valu("v_and_b32", vT[0], 1, vG)
    A.valu("v_lshl_add_u32", vQw, vT[0], 3, vQw)
    A.valu("v_add_u32", vQw, sRing, vQw)
    A.valu("v_lshlrev_b32", vStR, 4, vQ)
    A.valu("v_add_u32", vStR, STATS, vStR)
    A.salu("s_lshl_b32", sT1, sW, 2)
    A.valu("v_add_u32", vStW, sT1, vStR)
    A.salu("s_mul_i32", sT1, sW, 20480)
    A.valu("v_add_u32", vPw, sT1, vLin)
    A.salu("s_mov_b32", sC, f2u(math.log2(math.e) / 16.0))
    A.salu("s_lshl_b32", sT0, sB, 7)
    A.salu("s_lshl_b32", sT1, sHQ, 3)
    A.salu("s_add_u32", sT0, sT0, sT1)
    A.salu("s_lshl_b32", sT1, sW, 1)
    A.salu("s_add_u32", sT0, sT0, sT1)
    A.salu("s_mul_i32", sT0, sT0, 5120)
    srd(A, sO, pWS, sT0, 10240)

    def lin(off):
        return (vLin, off) if off < 40960 else (vLin2, off - 40960)

    acc = lambda dt, qt: a((dt * 5 + qt) * 4, 4)
    Af = lambda p, dt: a(80 + 36 * p + 4 * dt, 4)
    Bf = lambda p, qt: a(96 + 36 * p + 4 * qt, 4)
    A.wait_vm(xseq[-1])
    A.barrier()
    def qp_reads(ks):
        p = ks & 1
        out = []
        def mk_tr(dt, u):
            return lambda: A.dsread(Af(p, dt).sub(2 * u, 2), vTR[dt], (ks % 4) * 4096 + u * 2048, tr=True)
        def mk_b(qt):
            def f():
                ad, im = lin((ks * 5 + qt) * 1024)
                A.dsread(Bf(p, qt), ad, im)
            return f
        out.append(lambda: A.wait_vm(wqseq[(ks, 3)]))
        out.append(mk_b(0))
        for dt in range(4):
            out.append(mk_tr(dt, 0)); out.append(mk_tr(dt, 1))
        for qt in range(1, 5): out.append(mk_b(qt))
        return out
    for f in qp_reads(0): f()
    for ks in range(14):
        p = ks & 1
        A.wait_lg_all()
        mf = []
        for qt in range(5):
            for dt in range(4):
                mf.append(lambda dt=dt, qt=qt: A.mfma16(acc(dt, qt), Af(p, dt), Bf(p, qt), acc(dt, qt) if ks else 0))
        fill = []
        if ks + 4 < 14:
            for j in range(4): fill.append(lambda j=j: issue_wq(ks + 4, j))
        nk = OPT["KQ"] if ks < 10 else 8
        for _ in range(nk):
            fill.append(lambda: issue_k() if A.vm_issued - A.vm_done < 62 else None)
        if ks + 1 < 14:
            fill += qp_reads(ks + 1)
        interleave(A, mf, fill, start=0, per=1)
    for dt in range(4):
        for qt in range(5):
            t = vPk[(dt * 5 + qt) & 1]
            for r in range(4):
                A.valu("v_accvgpr_read_b32", t[r], acc(dt, qt)[r])
            A.valu("v_cvt_pk_bf16_f32", t[0], t[0], t[1])
            A.valu("v_cvt_pk_bf16_f32", t[1], t[2], t[3])
            A.dswrite(vQw, t.sub(0, 2), ((dt >> 1) * 5 + qt) * 1024 + (dt & 1) * 512)
            if A.vm_issued - A.vm_done < 62: issue_k()
    A.wait_lg_all()
    A.barrier()
    Qf = lambda ks, qt: a((ks * 5 + qt) * 4, 4)
    for ks in range(8):
        for qt in range(5):
            A.dsread(Qf(ks, qt), vQr, (ks >> 1) * RINGSZ + ((ks & 1) * 5 + qt) * 1024)
    while A.vm_issued - A.vm_done < 62 and issue_k(): pass
    A.wait_lg_all()
    A.barrier()

    vseq = {}
    vnext = [0]
    def issue_v():
        i = vnext[0]
        T, h = i >> 1, i & 1
        A.salu("s_add_u32", M0, sRing, (T % 9) * 2048 + h * 1024)
        A.salu("s_xor_b32", sT1, T * 8192 + h * 4096, sR8)
        vseq[i] = A.bload_lds(vVs, sV, sT1)
        vnext[0] += 1
    def try_kv():
        if A.vm_issued - A.vm_done >= 62: return
        if issue_k(): return
        if vnext[0] < 18: issue_v()
    def max_ops(kt):
        out = []
        for qt in range(5):
            S = Sreg(kt, qt)
            if kt == 0:
                out.append(lambda S=S, qt=qt: A.valu("v_max3_f32", vM[qt], S[0], S[1], S[2]))
                out.append(lambda S=S, qt=qt: A.valu("v_max_f32", vM[qt], vM[qt], S[3]))
            else:
                out.append(lambda S=S, qt=qt: A.valu("v_max3_f32", vM[qt], vM[qt], S[0], S[1]))
                out.append(lambda S=S, qt=qt: A.valu("v_max3_f32", vM[qt], vM[qt], S[2], S[3]))
        return out
    for kt in range(8):
        mf = []
        for ks in range(8):
            for qt in range(5):
                def m(kt=kt, ks=ks, qt=qt):
                    if qt == 0:
                        while (kt, ks) not in kseq: issue_k()
                        A.wait_vm(kseq[(kt, ks)])
                    A.mfma16(Sreg(kt, qt), Kreg(kt, ks), Qf(ks, qt), Sreg(kt, qt) if ks else 0)
                mf.append(m)
        fill = []
        for _ in range(4): fill.append(try_kv)
        if kt > 0: fill += max_ops(kt - 1)
        for _ in range(12): fill.append(try_kv)
        interleave(A, mf, fill, start=2, per=1)
    while vnext[0] < 18: issue_v()
    for f in max_ops(7): f()

    def xreduce(vals, op):
        for pl in ("v_permlane16_swap_b32", "v_permlane32_swap_b32"):
            for qt in range(5): A.valu("v_mov_b32", vT[qt], vals[qt])
            for qt in range(5): A.permlane(pl, vals[qt], vT[qt])
            for qt in range(5): A.valu(op, vals[qt], vals[qt], vT[qt])
    xreduce(vM, "v_max_f32")
    for qt in range(5): A.dswrite(vStW, vM[qt], qt * 256)
    A.wait_lg_all()
    A.barrier()
    tmpq = [v(64 + 32 * 2 + 20, 4), v(64 + 32 * 2 + 24, 4), v(64 + 32 * 2 + 28, 4), v(64 + 32 * 3 + 20, 4), v(64 + 32 * 3 + 24, 4)]
    for qt in range(5): A.dsread(tmpq[qt], vStR, qt * 256)
    A.wait_lg_all()
    for qt in range(5):
        t = tmpq[qt]
        A.valu("v_max3_f32", vM[qt], t[0], t[1], t[2])
        A.valu("v_max_f32", vM[qt], vM[qt], t[3])
    for qt in range(5):
        A.valu("v_mul_f32", vM[qt], sC, vM[qt])
    first = [True] * 5
    for j in range(4):
        for qt in range(5):
            pk = vPk[(j * 5 + qt) & 1]
            for t in range(2):
                S = Sreg(2 * j + t, qt)
                for r in range(4):
                    A.valu("v_fma_f32", S[r], S[r], sC, Neg(vM[qt]))
                for r in range(4):
                    A.valu("v_exp_f32", S[r], S[r])
            for t in range(2):
                S = Sreg(2 * j + t, qt)
                A.valu("v_cvt_pk_bf16_f32", pk[2 * t], S[0], S[1])
                A.valu("v_cvt_pk_bf16_f32", pk[2 * t + 1], S[2], S[3])
                if first[qt]:
                    A.valu("v_add_f32", vL[qt], S[0], S[1]); first[qt] = False
                else:
                    A.valu("v_add_f32", vL[qt], vL[qt], S[0])
                    A.valu("v_add_f32", vL[qt], vL[qt], S[1])
                A.valu("v_add_f32", vL[qt], vL[qt], S[2])
                A.valu("v_add_f32", vL[qt], vL[qt], S[3])
            A.dswrite(vPw, pk, (j * 5 + qt) * 1024)
    xreduce(vL, "v_add_f32")
    for qt in range(5): A.dswrite(vStW, vL[qt], 2048 + qt * 256)
    A.wait_lg_all()
    A.barrier()

    O = lambda dt, qt: v(64 + (dt * 5 + qt) * 4, 4)
    Vf = lambda p, dt: a(36 * p + 4 * dt, 4)
    Pf = lambda p, qt: a(16 + 36 * p + 4 * qt, 4)
    def pv_reads(j):
        p = j & 1
        out = []
        def mk_tr(dt, u):
            T = 2 * j + u
            return lambda: A.dsread(Vf(p, dt).sub(2 * u, 2), vTR[dt], (T % 9) * 2048, tr=True)
        def mk_b(qt):
            def f():
                ad, im = lin((j * 5 + qt) * 1024)
                A.dsread(Pf(p, qt), ad, im)
            return f
        for qt in range(5): out.append(mk_b(qt))
        out.append(lambda: A.wait_vm(vseq[4 * j + 3]))
        for dt in range(4):
            out.append(mk_tr(dt, 0)); out.append(mk_tr(dt, 1))
        return out
    for f in pv_reads(0): f()
    sumt = [v(160 + 4 * qt, 4) for qt in range(5)]
    for j in range(16):
        p = j & 1
        A.wait_lg_all()
        mf = []
        for qt in range(5):
            for dt in range(4):
                mf.append(lambda dt=dt, qt=qt: A.mfma16(O(dt, qt), Vf(p, dt), Pf(p, qt), O(dt, qt) if j else 0))
        fill = []
        for _ in range(4):
            fill.append(lambda: issue_v() if vnext[0] < 64 else None)
        if j + 1 < 16:
            fill += pv_reads(j + 1)
        if j == 15:
            for qt in range(5): fill.append(lambda qt=qt: A.dsread(sumt[qt], vStR, 2048 + qt * 256))
            fill.append(lambda: A.wait_lg_all())
            for qt in range(5):
                t = sumt[qt]
                fill.append(lambda t=t: A.valu("v_add_f32", t[0], t[0], t[1]))
                fill.append(lambda t=t: A.valu("v_add_f32", t[2], t[2], t[3]))
                fill.append(lambda t=t: A.valu("v_add_f32", t[0], t[0], t[2]))
                fill.append(lambda t=t, qt=qt: A.valu("v_rcp_f32", vL[qt], t[0]))
        interleave(A, mf, fill, start=0, per=1)
    n = 0
    for qt in range(5):
        for e in range(2):
            pk = v(180 + 4 * n, 4); n += 1
            for t in range(2):
                o = O(2 * e + t, qt)
                for r in range(4):
                    A.valu("v_mul_f32", o[r], o[r], vL[qt])
                A.valu("v_cvt_pk_bf16_f32", pk[2 * t], o[0], o[1])
                A.valu("v_cvt_pk_bf16_f32", pk[2 * t + 1], o[2], o[3])
            off = (e * 5 + qt) * 1024
            A.salu("s_mov_b32", sT1, off & ~4095)
            A.bstore(pk, vLin, sO, sT1, off=off & 4095)
    A.label("L_attn_end")
    A.other("s_endpgm")
    return A

def kernel2():
    A = Asm()
    A.raw(".p2align 8")
    A.raw(".globl oproj_kernel")
    A.raw(".type oproj_kernel,@function")
    A.label("oproj_kernel")
    A.scmp("s_cmp_ge_u32", s(2), 224)
    A.other("s_cbranch_scc1 L_oproj_end")
    A.other("s_load_dwordx16 s[4:19], s[0:1], 0")
    pX, pK, pV, pWQ, pWO, pOUT, pDBG, pWS = [s(4 + 2 * i, 2) for i in range(8)]
    sO, sWO, sOUT = s(20, 4), s(24, 4), s(28, 4)
    sW, sB, sNB, sT0, sT1, sT2, sRing, sKb = [s(32 + i) for i in range(8)]
    vLane, vQ, vG, vLin, vWs = v(1), v(2), v(3), v(4), v(5)
    vTR = [v(6), v(7)]
    vT = [v(8 + i) for i in range(4)]
    vRed, vOut = v(12), v(13)
    A.valu("v_lshrrev_b32", vT[0], 6, v(0))
    A.valu("v_and_b32", vLane, 63, v(0))
    A.readfirstlane(sW, vT[0])
    A.salu("s_and_b32", sT0, s(2), 7)
    A.salu("s_lshr_b32", sNB, s(2), 3)
    A.salu("s_lshl_b32", sB, sT0, 1)
    A.scmp("s_cmp_ge_u32", sNB, 14)
    A.salu("s_cselect_b32", sT1, 1, 0)
    A.salu("s_add_u32", sB, sB, sT1)
    A.salu("s_mul_i32", sT1, sT1, 14)
    A.salu("s_sub_u32", sNB, sNB, sT1)
    A.valu("v_and_b32", vQ, 15, vLane)
    A.valu("v_lshrrev_b32", vG, 4, vLane)
    A.valu("v_lshlrev_b32", vLin, 4, vLane)
    A.valu("v_lshrrev_b32", vT[0], 2, vLane)
    A.valu("v_and_b32", vT[1], 3, vLane)
    A.valu("v_bfe_u32", vT[2], vT[0], 2, 1)
    A.valu("v_lshlrev_b32", vT[2], 1, vT[2])
    A.valu("v_xor_b32", vT[1], vT[1], vT[2])
    A.valu("v_lshlrev_b32", vT[1], 4, vT[1])
    A.valu("v_mul_u32_u24", vWs, 896, vT[0])
    A.valu("v_add_u32", vWs, vWs, vT[1])
    A.other("s_waitcnt lgkmcnt(0)")
    A.salu("s_mul_i32", sT0, sB, 655360)
    A.salu("s_mul_i32", sT1, sW, 81920)
    A.salu("s_add_u32", sT0, sT0, sT1)
    srd(A, sO, pWS, sT0, 81920)
    A.salu("s_lshl_b32", sT0, sNB, 6)
    A.salu("s_mul_i32", sT1, sW, 512 * 896)
    A.salu("s_add_u32", sT0, sT0, sT1)
    A.salu("s_sub_u32", sT2, 3670016, sT0)
    srd(A, sWO, pWO, sT0, sT2)
    A.salu("s_lshl_b32", sRing, sW, 14)
    A.valu("v_lshrrev_b32", vT[0], 2, vQ)
    A.valu("v_lshl_add_u32", vT[0], vG, 2, vT[0])
    A.valu("v_and_b32", vT[1], 3, vQ)
    A.valu("v_lshlrev_b32", vT[1], 3, vT[1])
    A.valu("v_lshl_add_u32", vT[1], vT[0], 6, vT[1])
    A.valu("v_add_u32", vT[1], sRing, vT[1])
    A.valu("v_and_b32", vT[2], 1, vG)
    for nt in range(2):
        A.valu("v_xor_b32", vT[3], nt, vT[2])
        A.valu("v_lshl_add_u32", vTR[nt], vT[3], 5, vT[1])
    DEPTH = 8
    Of = lambda ks, qt: v(96 + (ks % DEPTH) * 20 + 4 * qt, 4)
    acc = lambda nt, qt: v(16 + (nt * 5 + qt) * 4, 4)
    Wf = lambda p, nt: v(56 + 8 * p + 4 * nt, 4)
    oseq = {}; wseq = {}
    def issue(ks):
        out = []
        for u in range(2):
            def f(u=u):
                A.salu("s_add_u32", M0, sRing, (ks % DEPTH) * 2048 + u * 1024)
                A.salu("s_mov_b32", sT1, (ks * 32 + u * 16) * 896)
                wseq[(ks, u)] = A.bload_lds(vWs, sWO, sT1)
            out.append(f)
        for qt in range(5):
            def f(qt=qt):
                fidx = ks * 5 + qt
                A.salu("s_mov_b32", sT2, (fidx >> 2) * 4096)
                oseq[(ks, qt)] = A.bload(Of(ks, qt), vLin, sO, sT2, off=(fidx & 3) * 1024)
            out.append(f)
        return out
    for ks in range(DEPTH):
        for f in issue(ks): f()
    def reads(ks):
        p = ks & 1
        out = [lambda: A.wait_vm(wseq[(ks, 1)])]
        for nt in range(2):
            for u in range(2):
                out.append(lambda nt=nt, u=u: A.dsread(Wf(p, nt).sub(2 * u, 2), vTR[nt], (ks % DEPTH) * 2048 + u * 1024, tr=True))
        return out
    for f in reads(0): f()
    for ks in range(16):
        p = ks & 1
        A.wait_both(oseq[(ks, 4)], A.lg_issued - 1)
        mf = []
        for qt in range(5):
            for nt in range(2):
                mf.append(lambda nt=nt, qt=qt: A.mfma16(acc(nt, qt), Wf(p, nt), Of(ks, qt), acc(nt, qt) if ks else 0))
        fill = []
        if ks + 1 < 16: fill += reads(ks + 1)
        interleave(A, mf, fill, start=0, per=1)
        if ks + DEPTH < 16:
            for f in issue(ks + DEPTH): f()
    A.wait_lg_all()
    A.barrier()
    A.salu("s_mul_i32", sT0, sW, 10240)
    A.valu("v_add_u32", vRed, sT0, vLin)
    for nt in range(2):
        for qt in range(5):
            A.dswrite(vRed, acc(nt, qt), (nt * 5 + qt) * 1024)
    A.wait_lg_all()
    A.barrier()
    srd(A, sOUT, pOUT, 0, 1146880)
    def do_tile(sTile, tag):
        A.scmp("s_cmp_ge_u32", sTile, 5)
        A.salu("s_cselect_b32", sT1, 1, 0)
        A.salu("s_mul_i32", sT2, sT1, 5)
        A.salu("s_sub_u32", sT2, sTile, sT2)
        A.salu("s_lshl_b32", sKb, sTile, 10)
        A.valu("v_add_u32", vRed, sKb, vLin)
        A.valu("v_add_u32", vT[0], 40960, vRed)
        rr = [v(96 + 4 * i, 4) for i in range(8)]
        for i in range(8):
            if i < 4: A.dsread(rr[i], vRed, i * 10240)
            else: A.dsread(rr[i], vT[0], (i - 4) * 10240)
        A.salu("s_mul_i32", sKb, sB, 80)
        A.salu("s_lshl_b32", sT2, sT2, 4)
        A.salu("s_add_u32", sKb, sKb, sT2)
        A.salu("s_mul_i32", sKb, sKb, 896)
        A.salu("s_lshl_b32", sT2, sNB, 6)
        A.salu("s_add_u32", sKb, sKb, sT2)
        A.salu("s_lshl_b32", sT1, sT1, 5)
        A.salu("s_add_u32", sKb, sKb, sT1)
        A.valu("v_mul_u32_u24", vOut, 896, vQ)
        A.valu("v_lshl_add_u32", vOut, vG, 3, vOut)
        A.wait_lg_all()
        for step in (4, 2, 1):
            for i in range(step):
                for r in range(4):
                    A.valu("v_add_f32", rr[i][r], rr[i][r], rr[i + step][r])
        A.valu("v_cvt_pk_bf16_f32", rr[1][0], rr[0][0], rr[0][1])
        A.valu("v_cvt_pk_bf16_f32", rr[1][1], rr[0][2], rr[0][3])
        A.bstore(rr[1].sub(0, 2), vOut, sOUT, sKb)
    A.salu("s_mov_b32", sT0, sW)
    do_tile(sT0, "a")
    A.scmp("s_cmp_ge_u32", sW, 2)
    A.other("s_cbranch_scc1 L_oproj_end")
    A.salu("s_add_u32", sT0, sW, 8)
    A.wait_vm_all()
    do_tile(sT0, "b")
    A.label("L_oproj_end")
    A.other("s_endpgm")
    return A

def desc(name, vgpr, accum, sgpr=102):
    return f""".amdhsa_kernel {name}
  .amdhsa_next_free_vgpr {vgpr}
  .amdhsa_next_free_sgpr {sgpr}
  .amdhsa_accum_offset {accum}
  .amdhsa_group_segment_fixed_size 0
  .amdhsa_kernarg_size 64
  .amdhsa_user_sgpr_count 2
  .amdhsa_user_sgpr_kernarg_segment_ptr 1
  .amdhsa_system_sgpr_workgroup_id_x 1
.end_amdhsa_kernel
"""

def main():
    k1 = kernel1(); k2 = kernel2()
    out = HEADER
    out += f"; @launch kernel=attn_kernel grid=(256,1,1) block=(256,1,1) lds={LDS1}\n"
    out += f"; @launch kernel=oproj_kernel grid=(224,1,1) block=(512,1,1) lds=131072\n"
    out += '.amdgcn_target "amdgcn-amd-amdhsa--gfx950"\n.text\n'
    out += k1.text() + k2.text()
    out += '.section .rodata,"a"\n.p2align 6\n'
    out += desc("attn_kernel", 512, 256)
    out += ".p2align 6\n"
    out += desc("oproj_kernel", 256, 256)
    open(sys.argv[1], "w").write(out)
    print("k1:", sorted(k1.count.items(), key=lambda x: -x[1])[:12], "nops", k1.nops)
    print("k2:", sorted(k2.count.items(), key=lambda x: -x[1])[:12], "nops", k2.nops)

main()
```
